```python
import torch

def _softmax(x, axis=-1):
    return torch.softmax(x, dim=axis)
def _gelu(x):
    return torch.nn.functional.gelu(x, approximate="tanh")
def _silu(x):
    return torch.nn.functional.silu(x)
def _sigmoid(x):
    return torch.sigmoid(x)
def _layernorm(x, axis=-1, eps=1e-5):
    m = x.mean(dim=axis, keepdim=True)
    v = x.var(dim=axis, keepdim=True, unbiased=False)
    return (x - m) / torch.sqrt(v + eps)
def _scatter_add(tgt, idx, src, axis=0):
    return tgt.clone().index_add_(axis, idx, src)
def _segment_sum(src, seg, n):
    out = torch.zeros((n,) + src.shape[1:], dtype=src.dtype)
    return out.index_add_(0, seg, src)
def _pad(x, pw):
    flat = tuple(v for pair in reversed(pw) for v in pair)
    return torch.nn.functional.pad(x, flat)

kernel_name = 'parallel_sum__gqa_block_cached__swiglu_ffn__decode'

def setup_inputs():

    _w = (lambda a: (lambda t: t.to(torch.bfloat16) if t.is_floating_point() else t)(torch.as_tensor(a)))
    def _A_setup():
        B, Sq, D = 8, 1, 576
        Hq, Hkv, Sk, Dh = 32, 16, 8192, 128
        assert Hq % Hkv == 0, (Hq, Hkv)
        return {
            "x": _w((lambda *s: torch.randn(*s, dtype=torch.bfloat16) * 0.05)(B, Sq, D)),
            "k_cache": _w((lambda *s: torch.randn(*s, dtype=torch.bfloat16) * 3.2)(B, Hkv, Sk, Dh)),
            "v_cache": _w((lambda *s: torch.randn(*s, dtype=torch.bfloat16) * 1.6)(B, Hkv, Sk, Dh)),
            "wq": _w((lambda *s: torch.randn(*s, dtype=torch.bfloat16) * 3.2)(D, Hq * Dh) * (D ** -0.5)),
            "wo": _w((lambda *s: torch.randn(*s, dtype=torch.bfloat16) * 1.6)(Hq * Dh, D) * ((Hq * Dh) ** -0.5)),
        }
    _A_in = _A_setup()

    def _B_setup():
        B, S, D, F = 8, 1, 576, 4608
        return {
            "x": _w((lambda *s: torch.randn(*s, dtype=torch.bfloat16) * 0.05)(B, S, D)),
            "w_gate": _w((lambda *s: torch.randn(*s, dtype=torch.bfloat16) * 0.05)(D, F)),
            "w_up": _w((lambda *s: torch.randn(*s, dtype=torch.bfloat16) * 0.05)(D, F)),
            "w_down": _w((lambda *s: torch.randn(*s, dtype=torch.bfloat16) * 0.05)(F, D)),
        }
    _B_in = _B_setup()

    return {
        "A_x": _A_in["x"],
        "A_k_cache": _A_in["k_cache"],
        "A_v_cache": _A_in["v_cache"],
        "A_wq": _A_in["wq"],
        "A_wo": _A_in["wo"],
        "B_x": _B_in["x"],
        "B_w_gate": _B_in["w_gate"],
        "B_w_up": _B_in["w_up"],
        "B_w_down": _B_in["w_down"],
    }

def reference(A_x, A_k_cache, A_v_cache, A_wq, A_wo, B_x, B_w_gate, B_w_up, B_w_down):
    def _A_ref(x, k_cache, v_cache, wq, wo):
        B, Sq, D = x.shape
        Hq, Dh = 32, 128
        Hkv = k_cache.shape[1]
        rep = Hq // Hkv
        q = (lambda x, *d: x.permute(*d))((x @ wq).reshape(B, Sq, Hq, Dh), 0, 2, 1, 3)
        k = (lambda x, n, axis: torch.repeat_interleave(x, n, dim=axis))(k_cache, rep, axis=1)
        v = (lambda x, n, axis: torch.repeat_interleave(x, n, dim=axis))(v_cache, rep, axis=1)
        scores = torch.einsum("bhqd,bhkd->bhqk", q, k) * (Dh ** -0.5)
        p = _softmax(scores, axis=-1)
        o = torch.einsum("bhqk,bhkd->bhqd", p, v)
        return (lambda x, *d: x.permute(*d))(o, 0, 2, 1, 3).reshape(B, Sq, Hq * Dh) @ wo

    def _B_ref(x, w_gate, w_up, w_down):
        g = _silu(x @ w_gate)
        u = x @ w_up
        return (g * u) @ w_down

    x = A_x
    xn = _layernorm(x, axis=-1)
    return x + _A_ref(xn, A_k_cache, A_v_cache, A_wq, A_wo) + _B_ref(xn, B_w_gate, B_w_up, B_w_down)
```

```python
class Asm:
    def __init__(self):
        self.L = []
        self.uid = 0
    def __call__(self, s=""):
        for line in s.split("\n"):
            self.L.append("    " + line.strip() if line.strip() and not line.strip().endswith(":") else line.strip())
    def label(self, name):
        self.L.append(name + ":")
    def comment(self, s):
        self.L.append("    ; " + s)
    def newlabel(self, base):
        self.uid += 1
        return f"L_{base}_{self.uid}"
    def text(self):
        return "\n".join(self.L) + "\n"

    def srd(self, d, base, nbytes, off=None):
        if off is None:
            self(f"s_mov_b32 s{d}, s{base}")
            self(f"s_mov_b32 s{d+1}, s{base+1}")
        else:
            self(f"s_add_u32 s{d}, s{base}, {off}")
            self(f"s_addc_u32 s{d+1}, s{base+1}, 0")
        self(f"s_mov_b32 s{d+2}, {nbytes}")
        self(f"s_mov_b32 s{d+3}, 0x00020000")

    def nop(self, n):
        while n > 0:
            k = min(n, 16)
            self(f"s_nop {k-1}")
            n -= k

    def allreduce16(self, op, v, t=None):
        for r in (8, 4, 2, 1):
            self("s_nop 1")
            self(f"{op}_dpp v{v}, v{v}, v{v} row_ror:{r} row_mask:0xf bank_mask:0xf")
    def allreduce_rows(self, op, v, t):
        self(f"v_mov_b32 v{t}, v{v}")
        self("s_nop 1")
        self(f"v_permlane16_swap_b32 v{v}, v{t}")
        self("s_nop 1")
        self(f"{op} v{v}, v{v}, v{t}")
        self(f"v_mov_b32 v{t}, v{v}")
        self("s_nop 1")
        self(f"v_permlane32_swap_b32 v{v}, v{t}")
        self("s_nop 1")
        self(f"{op} v{v}, v{v}, v{t}")
    def allreduce64(self, op, v, t):
        self.allreduce16(op, v)
        self.allreduce_rows(op, v, t)

def kernel_header(name):
    return f""".globl {name}
.p2align 8
.type {name},@function
{name}:
"""
def kernel_desc(name, vgpr, sgpr=96):
    acc = min(256, (vgpr + 3) // 4 * 4)
    return f""".amdhsa_kernel {name}
  .amdhsa_next_free_vgpr {vgpr}
  .amdhsa_next_free_sgpr {sgpr}
  .amdhsa_accum_offset {acc}
  .amdhsa_group_segment_fixed_size 0
  .amdhsa_kernarg_size 96
  .amdhsa_user_sgpr_count 2
  .amdhsa_user_sgpr_kernarg_segment_ptr 1
  .amdhsa_system_sgpr_workgroup_id_x 1
.end_amdhsa_kernel
"""
```

```python
from asmlib import *
from k1 import emit_ln

KN = "parallel_sum__gqa_block_cached__swiglu_ffn__decode_kernel"
WS_MASTER = 0
WS_PRE = 0x1000
PRE_B = 6656*8
WS_OP = 0x80000
OP_S = 2304
WS_YU = 0x120000
YU_S = 4096
WS_SIZE = 0x300000

L_T1 = 0
L_RED = 18432
L_CNT = 34816
L_OP = 34880
L_ST = L_OP + 4096
L_HT = 39168
L_T4 = 47360
LDS_SIZE = 55552

VL, VG, VN = 1, 2, 3
M16 = 4
M32 = 6
SPIN = 1 << 20

def mfma32(A, d, a, b, c=None):
    cs = f"v[{d}:{d+3}]" if c is None else c
    A(f"v_mfma_f32_16x16x32_bf16 v[{d}:{d+3}], v[{a}:{a+3}], v[{b}:{b+3}], {cs}")
def mfma16(A, d, a, b):
    A(f"v_mfma_f32_16x16x16_bf16 v[{d}:{d+3}], v[{a}:{a+1}], v[{b}:{b+1}], v[{d}:{d+3}]")

def emit_unit_compute(A, nl, W, vtab, poff, XD, D, B, waits=None):
    for t in range(nl):
        for p in range(2):
            A(f"ds_read_b32 v{XD+2*t+p}, v{vtab} offset:{16*t+poff*p}")
    for i in range(8): A(f"v_mov_b32 v{D+i}, 0")
    for t in range(nl):
        bs = B + 4*(t & 1)
        A(f"s_waitcnt lgkmcnt({min(15, 2*(nl-1-t))})")
        for p in range(2):
            A(f"v_and_b32 v{bs+2*p}, v{XD+2*t+p}, v{M16}")
            A(f"v_and_b32 v{bs+2*p+1}, v{XD+2*t+p}, v{M16+1}")
        A("s_nop 1")
        for p in range(2):
            mfma16(A, D+4*p, W+2*t, bs+2*p)

def emit_tagcheck(A, tags, acc, okl):
    for i, t in enumerate(tags):
        A(f"v_xor_b32 v{t}, s28, v{t}")
    cur = tags[0]
    rest = tags[1:]
    first = True
    while rest:
        a = rest.pop(0)
        b = rest.pop(0) if rest else None
        src = cur
        if b is not None: A(f"v_or3_b32 v{acc}, v{src}, v{a}, v{b}")
        else: A(f"v_or_b32 v{acc}, v{src}, v{a}")
        cur = acc
    if cur != acc: A(f"v_mov_b32 v{acc}, v{cur}")
    A(f"v_cmp_ne_u32 vcc, 0, v{acc}")
    A("s_nop 4")
    A(f"s_cbranch_vccz {okl}")

def emit_poll(A, name, issue, tags, acc, scnt, sleep=2):
    lp, ok = A.newlabel(name + "_poll"), A.newlabel(name + "_ok")
    A(f"s_mov_b32 s{scnt}, {SPIN}")
    A.label(lp)
    issue()
    A("s_waitcnt vmcnt(0)")
    emit_tagcheck(A, list(tags), acc, ok)
    A(f"s_sleep {sleep}")
    A(f"s_sub_u32 s{scnt}, s{scnt}, 1")
    A(f"s_cmp_lg_u32 s{scnt}, 0")
    A(f"s_cbranch_scc1 {lp}")
    A.label(ok)

def emit_hsync(A, cnt_off, target_s, vt, scnt):
    lp, ok = A.newlabel("hs_poll"), A.newlabel("hs_ok")
    A("s_waitcnt lgkmcnt(0)")
    A(f"v_mov_b32 v{vt}, {cnt_off}")
    A(f"v_mov_b32 v{vt+1}, 1")
    A("s_mov_b64 exec, 1")
    A(f"ds_add_u32 v{vt}, v{vt+1}")
    A("s_mov_b64 exec, -1")
    A(f"s_mov_b32 s{scnt}, {SPIN}")
    A.label(lp)
    A(f"ds_read_b32 v{vt+1}, v{vt}")
    A("s_waitcnt lgkmcnt(0)")
    A(f"v_readfirstlane_b32 s{scnt+1}, v{vt+1}")
    A("s_nop 3")
    A(f"s_cmp_ge_u32 s{scnt+1}, s{target_s}")
    A(f"s_cbranch_scc1 {ok}")
    A("s_sleep 1")
    A(f"s_sub_u32 s{scnt}, s{scnt}, 1")
    A(f"s_cmp_lg_u32 s{scnt}, 0")
    A(f"s_cbranch_scc1 {lp}")
    A.label(ok)

def emit_unit_out(A, hw_s, D, T, yu_index_s, sync):
    A.nop(8)
    A(f"v_lshlrev_b32 v{T}, 4, v{VL}")
    A(f"s_lshl_b32 s60, s{hw_s}, 11")
    A(f"v_add_u32 v{T}, s60, v{T}")
    for p in range(2):
        A(f"ds_write_b128 v{T}, v[{D+4*p}:{D+4*p+3}] offset:{L_RED+1024*p}")
    sync()
    A(f"v_bfe_u32 v{T}, v{VL}, 3, 2")
    A(f"v_lshlrev_b32 v{T}, 8, v{T}")
    A(f"v_lshrrev_b32 v{T+1}, 5, v{VL}")
    A(f"v_lshl_add_u32 v{T}, v{T+1}, 6, v{T}")
    A(f"v_and_b32 v{T+1}, 1, v{VL}")
    A(f"v_lshl_add_u32 v{T}, v{T+1}, 5, v{T}")
    A(f"v_bfe_u32 v{T+1}, v{VL}, 1, 2")
    A(f"v_lshl_add_u32 v{T}, v{T+1}, 2, v{T}")
    A(f"s_lshr_b32 s60, s{hw_s}, 1"); A("s_lshl_b32 s60, s60, 10")
    A(f"s_and_b32 s61, s{hw_s}, 1"); A("s_lshl_b32 s61, s61, 7"); A("s_add_u32 s60, s60, s61")
    A(f"v_add_u32 v{T}, s60, v{T}")
    R = T + 4
    for w in range(4):
        A(f"ds_read2_b32 v[{R+2*w}:{R+2*w+1}], v{T} offset0:{0} offset1:{4}" if False else
          f"ds_read_b32 v{R+2*w}, v{T} offset:{L_RED+2048*w}")
        A(f"ds_read_b32 v{R+2*w+1}, v{T} offset:{L_RED+2048*w+16}")
    A("s_waitcnt lgkmcnt(0)")
    O = T
    A(f"v_add_f32 v{R}, v{R}, v{R+2}"); A(f"v_add_f32 v{R+1}, v{R+1}, v{R+3}")
    A(f"v_add_f32 v{R+4}, v{R+4}, v{R+6}"); A(f"v_add_f32 v{R+5}, v{R+5}, v{R+7}")
    A(f"v_add_f32 v{O}, v{R}, v{R+4}"); A(f"v_add_f32 v{O+2}, v{R+1}, v{R+5}")
    A(f"v_mov_b32 v{O+1}, s28"); A(f"v_mov_b32 v{O+3}, s28")
    A(f"v_lshlrev_b32 v{R}, 4, v{VL}")
    A(f"s_lshl_b32 s60, s{yu_index_s}, 12"); A(f"s_lshl_b32 s61, s{hw_s}, 10"); A("s_add_u32 s60, s60, s61"); A(f"s_add_u32 s60, s60, {WS_YU}")
    A(f"buffer_store_dwordx4 v[{O}:{O+3}], v{R}, s[36:39], s60 offen sc1")

def gen_fused(A, R=4, partA=3, dbg=False):
    from k2 import emit_stream_loop
    A.L.append(kernel_header(KN))
    A("s_cmp_ge_u32 s2, 256")
    A("s_cbranch_scc1 F_end")
    A("s_load_dwordx16 s[4:19], s[0:1], 0")
    A("s_load_dwordx8 s[20:27], s[0:1], 64")
    A(f"v_and_b32 v{VL}, 63, v0")
    A(f"v_lshrrev_b32 v10, 6, v0")
    A(f"v_lshrrev_b32 v{VG}, 4, v{VL}")
    A(f"v_readfirstlane_b32 s3, v10")
    A(f"v_and_b32 v{VN}, 15, v0")
    A("s_and_b32 s29, s2, 7"); A("s_lshl_b32 s29, s29, 1"); A("s_bfe_u32 s30, s2, 0x10003"); A("s_add_u32 s29, s29, s30")
    A("s_lshr_b32 s30, s2, 5")
    A("s_bfe_u32 s31, s2, 0x10004")
    A("s_lshl_b32 s32, s30, 5"); A("s_lshl_b32 s33, s29, 1"); A("s_add_u32 s32, s32, s33"); A("s_add_u32 s32, s32, s31")
    A("v_mov_b32 v10, 0"); A(f"v_lshlrev_b32 v11, 2, v{VL}")
    A("s_mov_b64 exec, 0xffff"); A(f"ds_write_b32 v11, v10 offset:{L_CNT}"); A("s_mov_b64 exec, -1")
    A(f"v_and_b32 v10, 1, v{VN}")
    A("v_mov_b32 v11, 0xffff"); A("v_mov_b32 v12, 0xffff0000")
    A("v_cmp_eq_u32 vcc, 1, v10")
    A(f"v_bfe_u32 v10, v{VN}, 1, 2")
    A("s_nop 0")
    A("v_cndmask_b32 v11, v11, v12, vcc")
    for i in range(4):
        A(f"v_cmp_eq_u32 vcc, {i}, v10")
        A("s_nop 1")
        A(f"v_cndmask_b32 v{M32+i}, 0, v11, vcc")
    A(f"v_and_b32 v10, 2, v{VN}")
    A("v_cmp_eq_u32 vcc, 0, v10")
    A("s_nop 1")
    A(f"v_cndmask_b32 v{M16}, 0, v11, vcc")
    A(f"v_cndmask_b32 v{M16+1}, v11, 0, vcc")
    A("s_waitcnt lgkmcnt(0)")
    A(f"s_load_dword s28, s[26:27], {WS_MASTER}")
    A.srd(36, 26, WS_SIZE)
    A("s_sub_u32 s34, s3, 4")

    KO, VO, MX, LS, O, S, Z, P, B, Q, T, RING = 10, 11, 12, 13, 16, 20, 24, 28, 32, 40, 56, 64
    QG = 192
    def kloads(u):
        for kk in range(4):
            r = RING + 32*u + 4*kk
            A(f"buffer_load_dwordx4 v[{r}:{r+3}], v{KO}, s[40:43], s64 offen offset:{kk*64} nt")
        A("s_add_u32 s64, s64, 16384")
    def vloads(u):
        for i in range(4):
            r = RING + 32*u + 16 + 4*i
            A(f"buffer_load_dwordx4 v[{r}:{r+3}], v{VO}, s[44:47], s65 offen offset:{i*256} nt")
        A("s_add_u32 s65, s65, 16384")
    def qgather():
        for kk in range(4):
            for h in range(2):
                r = QG + 8*kk + 4*h
                A(f"buffer_load_dwordx4 v[{r}:{r+3}], v14, s[36:39], s66 offen offset:{kk*128+h*16} sc1")
    def stream_issue():
        A("s_lshl_b32 s60, s30, 4"); A("s_add_u32 s60, s60, s29")
        A("s_lshl_b32 s60, s60, 21"); A("s_lshl_b32 s61, s31, 20"); A("s_add_u32 s60, s60, s61")
        A.srd(40, 6, 0x100000, off="s60")
        A.srd(44, 8, 0x100000, off="s60")
        A(f"v_lshlrev_b32 v{KO}, 8, v{VN}"); A(f"v_lshl_add_u32 v{KO}, v{VG}, 4, v{KO}")
        A(f"v_lshlrev_b32 v{VO}, 10, v{VG}"); A(f"v_lshl_add_u32 v{VO}, v{VN}, 4, v{VO}")
        A(f"v_lshrrev_b32 v14, 3, v{VN}"); A("v_lshlrev_b32 v14, 9, v14"); A(f"v_lshl_add_u32 v14, v{VG}, 5, v14")
        A(f"s_mul_i32 s66, s30, {PRE_B}"); A("s_lshl_b32 s61, s29, 10"); A("s_add_u32 s66, s66, s61"); A(f"s_add_u32 s66, s66, {WS_PRE}")
        A("s_lshl_b32 s64, s3, 12"); A("s_lshl_b32 s65, s3, 12")
        for u in range(partA):
            kloads(u); vloads(u)
        qgather()
        for u in range(partA, R):
            kloads(u); vloads(u)
    NSTREAM = 8*R + 8

    A("s_cmp_ge_u32 s2, 208")
    A("s_cbranch_scc1 F_noS1")
    A("s_mov_b32 s60, 8192")
    A("s_lshl_b32 s61, s2, 7")
    A("s_mov_b32 s62, s10"); A("s_mov_b32 s63, s11")
    A("s_cmp_lt_u32 s2, 64")
    A("s_cbranch_scc1 F_sel")
    A("s_mov_b32 s60, 9216")
    A("s_sub_u32 s61, s61, 8192")
    A("s_mov_b32 s62, s16"); A("s_mov_b32 s63, s17")
    A("s_cmp_lt_u32 s2, 136")
    A("s_cbranch_scc1 F_sel")
    A("s_sub_u32 s61, s61, 9216")
    A("s_mov_b32 s62, s18"); A("s_mov_b32 s63, s19")
    A.label("F_sel")
    A("s_mul_i32 s67, s3, 1152")
    A.srd(52, 4, 1152, off="s67")
    A("s_mul_i32 s67, s60, 576"); A("s_sub_u32 s67, s67, s61")
    A("s_add_u32 s48, s62, s61"); A("s_addc_u32 s49, s63, 0"); A("s_mov_b32 s50, s67"); A("s_mov_b32 s51, 0x00020000")
    X, W1 = 224, 16+0
    W1 = 16
    A(f"v_lshlrev_b32 v15, 2, v{VL}")
    for j in range(5):
        A(f"buffer_load_dword v{X+j}, v15, s[52:55], 0 offen offset:{j*256}")
    A(f"v_mul_lo_u32 v15, v{VG}, s60")
    A(f"v_lshl_add_u32 v15, v{VN}, 3, v15")
    A("s_mul_i32 s67, s3, 72"); A("s_mul_i32 s67, s67, s60"); A("s_lshl_b32 s68, s60, 2")
    for t in range(18):
        A(f"buffer_load_dwordx2 v[{W1+2*t}:{W1+2*t+1}], v15, s[48:51], s67 offen nt")
        if t < 17: A("s_add_u32 s67, s67, s68")
    A("s_cmp_ge_u32 s3, 4")
    A("s_cbranch_scc1 F_p0_h")
    stream_issue()
    A(f"s_waitcnt vmcnt({18+NSTREAM})")
    A("s_branch F_p0_ln")
    A.label("F_p0_h")
    A("s_waitcnt vmcnt(18)")
    A.label("F_p0_ln")
    A("s_waitcnt lgkmcnt(0)")
    A("s_add_u32 s28, s28, 1")
    E = 230
    emit_ln(A, X, E, [240, 241, 242, 243, 244, 245], VL)
    A("s_mul_i32 s67, s3, 2304")
    A(f"v_lshlrev_b32 v15, 3, v{VL}")
    A(f"v_add_u32 v15, s67, v15")
    for j in range(4):
        A(f"ds_write_b64 v15, v[{E+2*j}:{E+2*j+1}] offset:{L_T1+j*512}")
    A(f"v_cmp_gt_u32 vcc, 32, v{VL}")
    A("s_and_saveexec_b64 s[68:69], vcc")
    A(f"ds_write_b64 v15, v[{E+8}:{E+9}] offset:{L_T1+4*512}")
    A("s_mov_b64 exec, s[68:69]")
    A("s_waitcnt lgkmcnt(0)")
    A("s_barrier")
    A(f"v_lshrrev_b32 v15, 2, v{VN}")
    A(f"v_mul_u32_u24 v15, 2304, v15")
    A(f"v_lshl_add_u32 v15, v{VG}, 2, v15")
    A("s_mul_i32 s67, s3, 288")
    A(f"v_add_u32 v15, s67, v15")
    A("s_cmp_ge_u32 s3, 4")
    A("s_cbranch_scc1 F_p0_h2")
    A(f"s_waitcnt vmcnt({NSTREAM})")
    A("s_branch F_p0_mm")
    A.label("F_p0_h2")
    A("s_waitcnt vmcnt(0)")
    A.label("F_p0_mm")
    D1, B1, XD = 52, 56+4, 224
    D1 = 244
    for i in range(8): A(f"v_mov_b32 v{D1+i}, 0")
    for half in range(2):
        for t in range(9):
            tt = half*9 + t
            for p in range(2):
                A(f"ds_read_b32 v{XD+2*t+p}, v15 offset:{L_T1+16*tt+9216*p}")
        for t in range(9):
            tt = half*9 + t
            bs = 56 + 4*(t & 1)
            A(f"s_waitcnt lgkmcnt({min(15, 2*(8-t))})")
            for p in range(2):
                A(f"v_and_b32 v{bs+2*p}, v{XD+2*t+p}, v{M16}")
                A(f"v_and_b32 v{bs+2*p+1}, v{XD+2*t+p}, v{M16+1}")
            A("s_nop 1")
            for p in range(2):
                mfma16(A, D1+4*p, W1+2*tt, bs+2*p)
    A.nop(8)
    A(f"v_lshlrev_b32 v15, 4, v{VL}")
    A("s_lshl_b32 s67, s3, 11")
    A(f"v_add_u32 v15, s67, v15")
    for p in range(2):
        A(f"ds_write_b128 v15, v[{D1+4*p}:{D1+4*p+3}] offset:{L_RED+1024*p}")
    A("s_waitcnt lgkmcnt(0)")
    A("s_barrier")
    A(f"v_and_b32 v15, 3, v{VL}")
    A(f"v_lshlrev_b32 v15, 4, v15")
    A(f"v_lshl_add_u32 v15, v{VG}, 8, v15")
    A(f"v_bfe_u32 v{XD}, v{VL}, 2, 2")
    A(f"v_lshl_add_u32 v15, v{XD}, 2, v15")
    A("s_and_b32 s67, s3, 3"); A("s_lshl_b32 s67, s67, 6"); A("s_lshr_b32 s68, s3, 2"); A("s_lshl_b32 s68, s68, 10"); A("s_add_u32 s67, s67, s68")
    A(f"v_add_u32 v15, s67, v15")
    for w in range(8):
        A(f"ds_read_b32 v{XD+w}, v15 offset:{L_RED+2048*w}")
    A("s_waitcnt lgkmcnt(0)")
    for w in range(1, 8):
        A(f"v_add_f32 v{XD}, v{XD}, v{XD+w}")
    A("s_nop 1")
    A(f"v_mov_b32_dpp v{XD+1}, v{XD} quad_perm:[1,0,3,2] row_mask:0xf bank_mask:0xf")
    A(f"v_cvt_pk_bf16_f32 v{XD+2}, v{XD}, v{XD+1}")
    A(f"v_mov_b32 v{XD+3}, s28")
    A(f"s_mul_i32 s67, s3, {PRE_B}"); A("s_lshl_b32 s68, s2, 8"); A("s_add_u32 s67, s67, s68"); A(f"s_add_u32 s67, s67, {WS_PRE}")
    A(f"v_lshlrev_b32 v15, 2, v{VL}")
    A("s_mov_b32 s68, 0x55555555"); A("s_mov_b32 s69, 0x55555555")
    A("s_mov_b64 exec, s[68:69]")
    A(f"buffer_store_dwordx2 v[{XD+2}:{XD+3}], v15, s[36:39], s67 offen sc1")
    A("s_mov_b64 exec, -1")
    A("s_cmp_ge_u32 s3, 4")
    A("s_cbranch_scc1 F_helper")
    A(f"s_waitcnt vmcnt({8*(R-partA)+1})")
    A("s_branch F_stream")
    A.label("F_noS1")
    A("s_cmp_ge_u32 s3, 4")
    A("s_cbranch_scc1 F_noS1_h")
    stream_issue()
    A("s_waitcnt lgkmcnt(0)")
    A("s_add_u32 s28, s28, 1")
    A("s_barrier")
    A(f"s_waitcnt vmcnt({8*(R-partA)})")
    A("s_branch F_stream")
    A.label("F_noS1_h")
    A("s_waitcnt lgkmcnt(0)")
    A("s_add_u32 s28, s28, 1")
    A("s_barrier")
    A("s_branch F_helper")

    A.label("F_stream")
    ok0 = "F_q_ok"
    emit_tagcheck(A, [QG+8*kk+4*h+o for kk in range(4) for h in range(2) for o in (1, 3)], T, ok0)
    emit_poll(A, "q", qgather, [QG+8*kk+4*h+o for kk in range(4) for h in range(2) for o in (1, 3)], T, 67)
    A.label(ok0)
    for kk in range(4):
        A(f"v_mov_b32 v{Q+4*kk}, v{QG+8*kk}"); A(f"v_mov_b32 v{Q+4*kk+1}, v{QG+8*kk+2}")
        A(f"v_mov_b32 v{Q+4*kk+2}, v{QG+8*kk+4}"); A(f"v_mov_b32 v{Q+4*kk+3}, v{QG+8*kk+6}")
    emit_stream_main(A, R, RING, KO, VO, Q, MX, LS, O, S, Z, P, B, T, 64, "F_loop", kloads, vloads)
    A.allreduce_rows("v_add_f32", LS, T)
    A(f"v_lshlrev_b32 v{T}, 4, v{VL}")
    A("s_lshl_b32 s60, s3, 10")
    A(f"v_add_u32 v{T}, s60, v{T}")
    A.nop(4)
    A(f"ds_write_b128 v{T}, v[{O}:{O+3}] offset:{L_OP}")
    A(f"v_and_b32 v{T+1}, 8, v{VL}")
    A("s_lshl_b32 s60, s3, 4")
    A(f"v_add_u32 v{T+1}, s60, v{T+1}")
    A("s_mov_b64 exec, 0x101")
    A(f"ds_write_b64 v{T+1}, v[{MX}:{MX+1}] offset:{L_ST}")
    A("s_mov_b64 exec, -1")
    A("s_waitcnt vmcnt(0) lgkmcnt(0)")
    A("s_barrier")
    A("s_cmp_ge_u32 s2, 144")
    A("s_cbranch_scc1 F_end")
    A("s_branch F_s4gather")

    A.label("F_helper")
    A("s_cmp_lg_u32 s3, 4")
    A("s_cbranch_scc1 F_h_nomaster")
    A.srd(56, 24, 256)
    A("v_mov_b32 v10, 0"); A("v_mov_b32 v11, 1")
    A("s_mov_b64 exec, 1")
    A("buffer_atomic_add v11, v10, s[56:59], 0 offen sc0 sc1")
    A("s_waitcnt vmcnt(0)")
    A("v_readfirstlane_b32 s60, v11")
    A("s_nop 3")
    A("s_cmp_lg_u32 s60, 255")
    A("s_cbranch_scc1 F_h_nomaster2")
    A("v_mov_b32 v11, s28")
    A(f"v_mov_b32 v10, {WS_MASTER}")
    A("buffer_store_dword v11, v10, s[36:39], 0 offen sc1")
    A.label("F_h_nomaster2")
    A("s_mov_b64 exec, -1")
    A.label("F_h_nomaster")
    HW = 34
    WU, XD, D, B2, T2 = 64, 160, 16, 24, 32
    A(f"v_mul_u32_u24 v10, 1152, v{VG}"); A(f"v_lshl_add_u32 v10, v{VN}, 3, v10")
    A("s_mov_b32 s72, 0")
    A("s_cmp_ge_u32 s2, 208")
    A("s_cbranch_scc1 F_s2_big")
    A("s_cmp_lt_u32 s2, 144"); A("s_cbranch_scc1 F_s2_done")
    A("s_cmp_ge_u32 s2, 162"); A("s_cbranch_scc1 F_s2_done")
    A("s_sub_u32 s60, s2, 144"); A("s_mul_i32 s70, s60, 57"); A("s_lshr_b32 s70, s70, 9"); A("s_mul_i32 s61, s70, 9"); A("s_sub_u32 s71, s60, s61")
    A("s_add_u32 s70, s70, 16"); A("s_mov_b32 s72, 1")
    A("s_branch F_s2_go")
    A.label("F_s2_big")
    A("s_sub_u32 s60, s2, 208"); A("s_mul_i32 s70, s60, 171"); A("s_lshr_b32 s70, s70, 9"); A("s_mul_i32 s61, s70, 3"); A("s_sub_u32 s71, s60, s61")
    A("s_mul_i32 s71, s71, 3"); A("s_mov_b32 s72, 3")
    A.label("F_s2_go")
    A("s_lshl_b32 s60, s70, 2"); A(f"s_add_u32 s60, s60, s{HW}"); A(f"s_mul_i32 s60, s60, {64*1152}"); A("s_lshl_b32 s61, s71, 7"); A("s_add_u32 s60, s60, s61")
    A("s_add_u32 s48, s20, s60"); A("s_addc_u32 s49, s21, 0"); A(f"s_sub_u32 s50, {64*1152}, s61"); A("s_mov_b32 s51, 0x00020000")
    for c in range(3):
        if c == 1:
            A("s_cmp_eq_u32 s72, 1"); A("s_cbranch_scc1 F_s2_wdone")
        A("s_mov_b32 s60, 0")
        for t in range(16):
            r = WU + 32*c + 2*t
            A(f"buffer_load_dwordx2 v[{r}:{r+1}], v10, s[48:51], s60 offen offset:{c*128} nt")
            if t < 15: A("s_add_u32 s60, s60, 4608")
    A.label("F_s2_wdone")
    A(f"v_lshrrev_b32 v11, 3, v{VL}"); A(f"s_mov_b32 s60, {PRE_B}"); A("v_mul_lo_u32 v11, v11, s60")
    A(f"v_and_b32 v12, 7, v{VL}"); A("v_lshl_add_u32 v11, v12, 5, v11")
    A("s_lshl_b32 s60, s70, 2"); A(f"s_add_u32 s60, s60, s{HW}"); A("s_lshl_b32 s60, s60, 8")
    A(f"s_add_u32 s73, s60, {WS_PRE + 4096*4}"); A(f"s_add_u32 s74, s60, {WS_PRE + 8704*4}")
    GG = 192
    def gu():
        A(f"buffer_load_dwordx4 v[{GG}:{GG+3}], v11, s[36:39], s73 offen sc1")
        A(f"buffer_load_dwordx4 v[{GG+4}:{GG+7}], v11, s[36:39], s73 offen offset:16 sc1")
        A(f"buffer_load_dwordx4 v[{GG+8}:{GG+11}], v11, s[36:39], s74 offen sc1")
        A(f"buffer_load_dwordx4 v[{GG+12}:{GG+15}], v11, s[36:39], s74 offen offset:16 sc1")
    emit_poll(A, "gu", gu, [GG+k for k in range(1, 16, 2)], T2, 67, sleep=8)
    HO = 208
    for k in range(4):
        gd, ud = GG+2*k, GG+8+2*k
        for h in range(2):
            g_, u_, a, b_, c_, d_ = T2, T2+1, T2+2, T2+3, T2+4, T2+5
            if h == 0:
                A(f"v_lshlrev_b32 v{g_}, 16, v{gd}"); A(f"v_lshlrev_b32 v{u_}, 16, v{ud}")
            else:
                A(f"v_and_b32 v{g_}, 0xffff0000, v{gd}"); A(f"v_and_b32 v{u_}, 0xffff0000, v{ud}")
            A(f"v_mul_f32 v{a}, 0xbfb8aa3b, v{g_}")
            A(f"v_exp_f32 v{a}, v{a}")
            A("s_nop 0")
            A(f"v_add_f32 v{a}, 1.0, v{a}")
            A(f"v_rcp_f32 v{b_}, v{a}")
            A("s_nop 0")
            A(f"v_mul_f32 v{c_}, v{g_}, v{b_}")
            A(f"v_fma_f32 v{d_}, -v{c_}, v{a}, v{g_}")
            A(f"v_fma_f32 v{c_}, v{d_}, v{b_}, v{c_}")
            A(f"v_cvt_pk_bf16_f32 v{c_}, v{c_}, v{c_}")
            A(f"v_and_b32 v{c_}, 0xffff0000, v{c_}")
            A(f"v_mul_f32 v{c_}, v{c_}, v{u_}")
            A(f"v_cvt_pk_bf16_f32 v{HO+2*k+h}, v{c_}, v{c_}")
    A(f"v_lshrrev_b32 v11, 3, v{VL}"); A("v_lshlrev_b32 v11, 8, v11"); A(f"v_and_b32 v12, 7, v{VL}"); A("v_lshl_add_u32 v11, v12, 5, v11")
    A(f"s_lshl_b32 s60, s{HW}, 11"); A("v_add_u32 v11, s60, v11")
    A(f"ds_write_b128 v11, v[{HO}:{HO+3}] offset:{L_HT}")
    A(f"ds_write_b128 v11, v[{HO+4}:{HO+7}] offset:{L_HT+16}")
    A(f"v_lshrrev_b32 v12, 2, v{VN}"); A("v_lshlrev_b32 v12, 8, v12"); A(f"v_lshl_add_u32 v12, v{VG}, 2, v12"); A("v_add_u32 v12, s60, v12")
    A(f"v_add_u32 v12, {L_HT}, v12")
    A("s_waitcnt lgkmcnt(0)")
    A("s_mov_b32 s75, 0")
    for c in range(3):
        if c == 1:
            A("s_cmp_eq_u32 s72, 1"); A("s_cbranch_scc1 F_s2_done")
        emit_unit_compute(A, 16, WU+32*c, 12, 1024, XD, D, B2)
        A("s_mul_i32 s76, s70, 9"); A("s_add_u32 s76, s76, s71"); A(f"s_add_u32 s76, s76, {144+c}")
        def sync():
            A("s_add_u32 s75, s75, 4")
            emit_hsync(A, L_CNT, 75, T2+2, 67)
        emit_unit_out(A, HW, D, T2, 76, sync)
        A("s_add_u32 s75, s75, 4")
        emit_hsync(A, L_CNT, 75, T2+2, 67)
    A.label("F_s2_done")
    A("s_cmp_ge_u32 s2, 144")
    A("s_cbranch_scc1 F_s4_nopf")
    A("s_mul_i32 s77, s2, 57"); A("s_lshr_b32 s77, s77, 9")
    A("s_mul_i32 s78, s77, 9"); A("s_sub_u32 s78, s2, s78")
    A("s_lshl_b32 s60, s77, 2"); A(f"s_add_u32 s60, s60, s{HW}"); A(f"s_mul_i32 s60, s60, {64*1152}"); A("s_lshl_b32 s61, s78, 7"); A("s_add_u32 s60, s60, s61")
    A("s_add_u32 s48, s12, s60"); A("s_addc_u32 s49, s13, 0"); A(f"s_sub_u32 s50, {64*1152}, s61"); A("s_mov_b32 s51, 0x00020000")
    A("s_mov_b32 s60, 0")
    for t in range(16):
        r = WU + 2*t
        A(f"buffer_load_dwordx2 v[{r}:{r+1}], v10, s[48:51], s60 offen nt")
        if t < 15: A("s_add_u32 s60, s60, 4608")
    A.label("F_s4_nopf")
    FS = 48
    A("s_cmp_lt_u32 s2, 168"); A("s_cbranch_scc1 F_fin_nopre")
    A("s_cmp_ge_u32 s2, 240"); A("s_cbranch_scc1 F_fin_nopre")
    A("s_cmp_lg_u32 s3, 4"); A("s_cbranch_scc1 F_fin_nopre")
    A("s_sub_u32 s60, s2, 168"); A("s_mul_i32 s79, s60, 57"); A("s_lshr_b32 s79, s79, 9")
    A("s_mul_i32 s80, s79, 9"); A("s_sub_u32 s80, s60, s80")
    A(f"v_lshrrev_b32 v11, 5, v{VL}"); A(f"v_mul_u32_u24 v11, {9*4096}, v11"); A(f"v_and_b32 v12, 31, v{VL}"); A("v_lshl_add_u32 v11, v12, 4, v11")
    A("s_lshl_b32 s81, s80, 12"); A("s_lshl_b32 s61, s79, 9"); A("s_add_u32 s81, s81, s61"); A(f"s_add_u32 s81, s81, {WS_YU}")
    FG = 192
    def fgather():
        A(f"s_add_u32 s60, s81, {144*4096}")
        for k in range(9):
            A(f"buffer_load_dwordx4 v[{FG+4*k}:{FG+4*k+3}], v11, s[36:39], s60 offen sc1")
            if k < 8: A(f"s_add_u32 s60, s60, {18*4096}")
    emit_poll(A, "ffn", fgather, [FG+4*k+o for k in range(9) for o in (1, 3)], T2, 67, sleep=8)
    A(f"v_mov_b32 v{FS}, v{FG}"); A(f"v_mov_b32 v{FS+1}, v{FG+2}")
    for k in range(1, 9):
        A(f"v_add_f32 v{FS}, v{FS}, v{FG+4*k}"); A(f"v_add_f32 v{FS+1}, v{FS+1}, v{FG+4*k+2}")
    for r in (FS, FS+1):
        A(f"v_mov_b32 v{T2}, v{r}"); A("s_nop 1"); A(f"v_permlane32_swap_b32 v{r}, v{T2}"); A("s_nop 1"); A(f"v_add_f32 v{r}, v{r}, v{T2}")
    A.srd(52, 4, 9216)
    A("s_mul_i32 s60, s79, 1152"); A("s_lshl_b32 s61, s80, 7"); A("s_add_u32 s82, s60, s61")
    A(f"v_lshlrev_b32 v13, 2, v12")
    A(f"buffer_load_dword v{FS+2}, v13, s[52:55], s82 offen")
    A.label("F_fin_nopre")
    A("s_waitcnt vmcnt(0) lgkmcnt(0)")
    A("s_barrier")
    A(f"s_lshr_b32 s60, s{HW}, 1")
    A(f"s_and_b32 s61, s{HW}, 1")
    t0, t1 = T2, T2+1
    A(f"v_lshrrev_b32 v{t0}, 5, v{VL}"); A("s_lshl_b32 s62, s61, 1"); A(f"v_add_u32 v{t0}, s62, v{t0}")
    A(f"v_lshlrev_b32 v{t0}, 8, v{t0}")
    A(f"v_and_b32 v{t1}, 7, v{VL}"); A(f"v_lshl_add_u32 v{t0}, v{t1}, 4, v{t0}")
    A(f"v_bfe_u32 v{t1}, v{VL}, 3, 2"); A(f"v_lshl_add_u32 v{t0}, v{t1}, 2, v{t0}")
    A("s_lshl_b32 s62, s60, 7"); A(f"v_add_u32 v{t0}, s62, v{t0}")
    OPr, SR = 16, 20
    for w in range(4): A(f"ds_read_b32 v{OPr+w}, v{t0} offset:{L_OP + 1024*w}")
    A("s_lshl_b32 s62, s60, 3"); A(f"v_mov_b32 v{t1}, s62")
    for w in range(4): A(f"ds_read_b64 v[{SR+2*w}:{SR+2*w+1}], v{t1} offset:{L_ST + 16*w}")
    A("s_waitcnt lgkmcnt(0)")
    MM, LL, OO = 28, 30, 34
    A(f"v_max3_f32 v{MM}, v{SR}, v{SR+2}, v{SR+4}"); A(f"v_max_f32 v{MM}, v{MM}, v{SR+6}")
    A("s_mov_b32 s63, 0x3fb8aa3b")
    for w in range(4):
        A(f"v_sub_f32 v{SR+2*w}, v{SR+2*w}, v{MM}"); A(f"v_mul_f32 v{SR+2*w}, s63, v{SR+2*w}"); A(f"v_exp_f32 v{SR+2*w}, v{SR+2*w}")
    A("s_nop 0")
    A(f"v_mul_f32 v{LL}, v{SR}, v{SR+1}"); A(f"v_mul_f32 v{OO}, v{SR}, v{OPr}")
    for w in range(1, 4):
        A(f"v_fmac_f32 v{LL}, v{SR+2*w}, v{SR+2*w+1}"); A(f"v_fmac_f32 v{OO}, v{SR+2*w}, v{OPr+w}")
    A(f"v_mov_b32 v{OO+1}, s28"); A(f"v_mov_b32 v{MM+1}, s28"); A(f"v_mov_b32 v{LL+1}, s28")
    A(f"s_mul_i32 s62, s32, {OP_S}"); A(f"s_add_u32 s62, s62, {WS_OP}")
    A(f"s_lshl_b32 s63, s{HW}, 9"); A("s_add_u32 s63, s63, s62")
    A(f"v_lshlrev_b32 v{t0}, 3, v{VL}")
    A(f"buffer_store_dwordx2 v[{OO}:{OO+1}], v{t0}, s[36:39], s63 offen sc1")
    A("s_cmp_lg_u32 s61, 0")
    A("s_cbranch_scc1 F_nostat")
    A("s_lshl_b32 s63, s60, 4"); A("s_add_u32 s63, s63, s62"); A("s_add_u32 s63, s63, 2048")
    A(f"v_mov_b32 v{t1}, 0")
    A("s_mov_b64 exec, 1")
    A(f"buffer_store_dwordx4 v[{MM}:{MM+3}], v{t1}, s[36:39], s63 offen sc1")
    A("s_mov_b64 exec, -1")
    A.label("F_nostat")
    A("s_cmp_lt_u32 s2, 144")
    A("s_cbranch_scc1 F_s4gather")
    A("s_cmp_lt_u32 s2, 168"); A("s_cbranch_scc1 F_end")
    A("s_cmp_ge_u32 s2, 240"); A("s_cbranch_scc1 F_end")
    A("s_cmp_lg_u32 s3, 4"); A("s_cbranch_scc1 F_end")
    FG = 192
    def sgather():
        A(f"s_mov_b32 s60, s81")
        for k in range(8):
            A(f"buffer_load_dwordx4 v[{FG+4*k}:{FG+4*k+3}], v11, s[36:39], s60 offen sc1")
            if k < 7: A(f"s_add_u32 s60, s60, {18*4096}")
    emit_poll(A, "fin", sgather, [FG+4*k+o for k in range(8) for o in (1, 3)], T2, 67, sleep=1)
    a0, a1 = T2+2, T2+3
    A(f"v_mov_b32 v{a0}, v{FG}"); A(f"v_mov_b32 v{a1}, v{FG+2}")
    for k in range(1, 8):
        A(f"v_add_f32 v{a0}, v{a0}, v{FG+4*k}"); A(f"v_add_f32 v{a1}, v{a1}, v{FG+4*k+2}")
    for r in (a0, a1):
        A(f"v_mov_b32 v{T2}, v{r}"); A("s_nop 1"); A(f"v_permlane32_swap_b32 v{r}, v{T2}"); A("s_nop 1"); A(f"v_add_f32 v{r}, v{r}, v{T2}")
    u0 = T2+4
    A(f"v_cvt_pk_bf16_f32 v{u0}, v{a0}, v{a1}")
    A(f"v_cvt_pk_bf16_f32 v{u0+1}, v{FS}, v{FS+1}")
    A(f"v_lshlrev_b32 v{a0}, 16, v{u0}"); A(f"v_and_b32 v{a1}, 0xffff0000, v{u0}")
    A(f"v_lshlrev_b32 v{u0+2}, 16, v{FS+2}"); A(f"v_and_b32 v{u0+3}, 0xffff0000, v{FS+2}")
    A(f"v_add_f32 v{a0}, v{a0}, v{u0+2}"); A(f"v_add_f32 v{a1}, v{a1}, v{u0+3}")
    A(f"v_cvt_pk_bf16_f32 v{u0}, v{a0}, v{a1}")
    A(f"v_lshlrev_b32 v{a0}, 16, v{u0}"); A(f"v_and_b32 v{a1}, 0xffff0000, v{u0}")
    A(f"v_lshlrev_b32 v{u0+2}, 16, v{u0+1}"); A(f"v_and_b32 v{u0+3}, 0xffff0000, v{u0+1}")
    A(f"v_add_f32 v{a0}, v{a0}, v{u0+2}"); A(f"v_add_f32 v{a1}, v{a1}, v{u0+3}")
    A(f"v_cvt_pk_bf16_f32 v{u0}, v{a0}, v{a1}")
    A.srd(56, 22, 9216)
    A(f"v_and_b32 v13, 31, v{VL}"); A("v_lshlrev_b32 v13, 2, v13")
    A("s_mov_b64 exec, 0xffffffff")
    A(f"buffer_store_dword v{u0}, v13, s[56:59], s82 offen")
    A("s_branch F_end")

    A.label("F_s4gather")
    A("s_mul_i32 s77, s2, 57"); A("s_lshr_b32 s77, s77, 9")
    A("s_lshl_b32 s60, s3, 5"); A("s_lshl_b32 s61, s77, 1"); A("s_add_u32 s60, s60, s61"); A(f"s_mul_i32 s60, s60, {OP_S}"); A(f"s_add_u32 s83, s60, {WS_OP}")
    A(f"s_add_u32 s84, s83, {OP_S}")
    G4 = 192
    A(f"v_lshlrev_b32 v50, 5, v{VL}")
    A(f"v_lshrrev_b32 v51, 5, v{VL}"); A("v_lshlrev_b32 v51, 4, v51"); A("v_add_u32 v51, 2048, v51")
    def s4g():
        for s_, so in ((0, 83), (1, 84)):
            b0 = G4 + 12*s_
            A(f"buffer_load_dwordx4 v[{b0}:{b0+3}], v50, s[36:39], s{so} offen sc1")
            A(f"buffer_load_dwordx4 v[{b0+4}:{b0+7}], v50, s[36:39], s{so} offen offset:16 sc1")
            A(f"buffer_load_dwordx4 v[{b0+8}:{b0+11}], v51, s[36:39], s{so} offen sc1")
    emit_poll(A, "s4g", s4g, [G4+k for k in range(1, 24, 2)], 52, 67, sleep=1)
    M0, L0, M1, L1 = G4+8, G4+10, G4+20, G4+22
    a, a0, a1, L_, w = 52, 53, 54, 55, 56
    A(f"v_max_f32 v{a}, v{M0}, v{M1}")
    A(f"v_sub_f32 v{a0}, v{M0}, v{a}"); A(f"v_sub_f32 v{a1}, v{M1}, v{a}")
    A("s_mov_b32 s63, 0x3fb8aa3b")
    A(f"v_mul_f32 v{a0}, s63, v{a0}"); A(f"v_mul_f32 v{a1}, s63, v{a1}")
    A(f"v_exp_f32 v{a0}, v{a0}"); A(f"v_exp_f32 v{a1}, v{a1}")
    A("s_nop 0")
    A(f"v_mul_f32 v{L_}, v{a0}, v{L0}"); A(f"v_fmac_f32 v{L_}, v{a1}, v{L1}")
    A(f"v_rcp_f32 v{a}, v{L_}")
    A("s_nop 0")
    OT = 60
    for r in range(4):
        o0, o1 = G4 + 2*r, G4 + 12 + 2*r
        n_, y_, e_ = 56, 57, 58
        A(f"v_mul_f32 v{n_}, v{a0}, v{o0}"); A(f"v_fmac_f32 v{n_}, v{a1}, v{o1}")
        A(f"v_mul_f32 v{y_}, v{n_}, v{a}")
        A(f"v_fma_f32 v{e_}, -v{y_}, v{L_}, v{n_}")
        A(f"v_fma_f32 v{y_}, v{e_}, v{a}, v{y_}")
        A(f"v_cvt_pk_bf16_f32 v{OT+r}, v{y_}, v{y_}")
    A(f"v_lshlrev_b32 v50, 4, v{VL}"); A("s_lshl_b32 s60, s3, 10"); A("v_add_u32 v50, s60, v50")
    A(f"ds_write_b128 v50, v[{OT}:{OT+3}] offset:{L_T4}")
    A("s_waitcnt lgkmcnt(0)")
    A("s_barrier")
    A("s_cmp_lt_u32 s3, 4")
    A("s_cbranch_scc1 F_end")
    A(f"v_lshrrev_b32 v12, 2, v{VN}"); A("v_lshlrev_b32 v12, 10, v12"); A(f"v_lshl_add_u32 v12, v{VG}, 2, v12")
    A(f"s_lshl_b32 s60, s{HW}, 8"); A(f"s_add_u32 s60, s60, {L_T4}"); A("v_add_u32 v12, s60, v12")
    emit_unit_compute(A, 16, WU, 12, 4096, XD, D, B2)
    def sync2():
        A("s_waitcnt lgkmcnt(0)"); A("s_barrier")
    A("s_mov_b32 s76, s2")
    emit_unit_out(A, HW, D, T2, 76, sync2)
    A.label("F_end")
    A("s_endpgm")
    return dict(name=KN, vgpr=256, grid=256, block=512, lds=LDS_SIZE)

def emit_stream_main(A, R, RING, KO, VO, Q, MX, LS, O, S, Z, P, B, T, ntiles, label, kloads, vloads):
    M = M32
    A(f"v_mov_b32 v{MX}, 0xff7fffff")
    A(f"v_mov_b32 v{LS}, 0")
    for i in range(4): A(f"v_mov_b32 v{O+i}, 0")
    A("s_mov_b32 s60, 0x3db504f3")
    A("s_mov_b32 s61, 0x3fb8aa3b")
    A(f"s_mov_b32 s62, {ntiles//R}")
    NW = 8*R - 4
    A.label(label)
    for u in range(R):
        kb = RING + 32*u
        A(f"s_waitcnt vmcnt({NW})")
        for kk in range(4):
            mfma32(A, S, kb+4*kk, Q+4*kk, "0" if kk == 0 else None)
        kloads(u)
        A("s_nop 2")
        for rnd in range(2):
            src = S if rnd == 0 else Z
            A(f"v_cvt_pk_bf16_f32 v{T}, v{src}, v{src+1}")
            A(f"v_cvt_pk_bf16_f32 v{T+1}, v{src+2}, v{src+3}")
            A(f"v_lshlrev_b32 v{Z}, 16, v{T}")
            A(f"v_and_b32 v{Z+1}, 0xffff0000, v{T}")
            A(f"v_lshlrev_b32 v{Z+2}, 16, v{T+1}")
            A(f"v_and_b32 v{Z+3}, 0xffff0000, v{T+1}")
            if rnd == 0:
                for i in range(4): A(f"v_mul_f32 v{Z+i}, s60, v{Z+i}")
        A(f"v_max3_f32 v{T}, v{Z}, v{Z+1}, v{Z+2}")
        A(f"v_max3_f32 v{T}, v{T}, v{Z+3}, v{MX}")
        A.allreduce_rows("v_max_f32", T, T+1)
        A(f"v_sub_f32 v{T+1}, v{MX}, v{T}")
        A(f"v_mul_f32 v{T+1}, s61, v{T+1}")
        A(f"v_exp_f32 v{T+1}, v{T+1}")
        A(f"v_mov_b32 v{MX}, v{T}")
        A(f"v_mul_f32 v{T+2}, s61, v{T}")
        for i in range(4):
            A(f"v_fma_f32 v{P+i}, v{Z+i}, s61, -v{T+2}")
        for i in range(4):
            A(f"v_exp_f32 v{P+i}, v{P+i}")
        for i in range(4):
            A(f"v_mul_f32 v{O+i}, v{O+i}, v{T+1}")
        A(f"v_fma_f32 v{LS}, v{LS}, v{T+1}, v{P}")
        for i in range(1, 4):
            A(f"v_add_f32 v{LS}, v{LS}, v{P+i}")
        for i in range(4):
            A(f"v_cvt_pk_bf16_f32 v{P+i}, v{P+i}, v{P+i}")
        A(f"s_waitcnt vmcnt({NW})")
        vb = kb + 16
        def ands(bs, i):
            for j in range(4): A(f"v_and_b32 v{bs+j}, v{P+i}, v{M+j}")
        def pv(bs, i): mfma32(A, O, vb+4*i, bs)
        ands(B, 0); ands(B+4, 1); pv(B, 0); ands(B, 2); pv(B+4, 1); ands(B+4, 3); pv(B, 2); A("s_nop 0"); pv(B+4, 3)
        vloads(u)
    A("s_sub_u32 s62, s62, 1")
    A("s_cmp_lg_u32 s62, 0")
    A(f"s_cbranch_scc1 {label}")
```

```python
from asmlib import *
WS_PRE = 0
PRE_ROW = 13312*2
WS_Y = 0x40000
WS_ST = 0x200000

def emit_ln(A, X, E, tmp, vlane):
    t0, t1, t2, t3, t4, t5 = tmp[:6]
    for j in range(5):
        A(f"v_lshlrev_b32 v{E+2*j}, 16, v{X+j}")
        A(f"v_and_b32 v{E+2*j+1}, 0xffff0000, v{X+j}")
    A(f"v_add_f32 v{t0}, v{E}, v{E+1}")
    for k in range(2, 10):
        A(f"v_add_f32 v{t0}, v{t0}, v{E+k}")
    A.allreduce64("v_add_f32", t0, t1)
    A(f"v_mul_f32 v{t0}, 0x3ae38e39, v{t0}")
    A(f"v_cmp_gt_u32 vcc, 32, v{vlane}")
    A(f"v_sub_f32 v{t2}, v{E}, v{t0}")
    A(f"v_mul_f32 v{t1}, v{t2}, v{t2}")
    for k in range(1, 8):
        A(f"v_sub_f32 v{t2}, v{E+k}, v{t0}")
        A(f"v_fmac_f32 v{t1}, v{t2}, v{t2}")
    for k in (8, 9):
        A(f"v_sub_f32 v{t2}, v{E+k}, v{t0}")
        A(f"v_cndmask_b32 v{t2}, 0, v{t2}, vcc")
        A(f"v_fmac_f32 v{t1}, v{t2}, v{t2}")
    A.allreduce64("v_add_f32", t1, t2)
    A(f"v_mul_f32 v{t1}, 0x3ae38e39, v{t1}")
    A(f"v_cvt_pk_bf16_f32 v{t2}, v{t0}, v{t1}")
    A(f"v_lshlrev_b32 v{t0}, 16, v{t2}")
    A(f"v_and_b32 v{t1}, 0xffff0000, v{t2}")
    A(f"v_add_f32 v{t1}, 0x3727c5ac, v{t1}")
    A(f"v_cvt_pk_bf16_f32 v{t1}, v{t1}, v{t1}")
    A(f"v_and_b32 v{t1}, 0xffff0000, v{t1}")
    A(f"v_sqrt_f32 v{t1}, v{t1}")
    A("s_nop 0")
    A(f"v_cvt_pk_bf16_f32 v{t1}, v{t1}, v{t1}")
    A(f"v_and_b32 v{t1}, 0xffff0000, v{t1}")
    A(f"v_rcp_f32 v{t2}, v{t1}")
    A("s_nop 0")
    for j in range(5):
        a, b = E+2*j, E+2*j+1
        A(f"v_sub_f32 v{a}, v{a}, v{t0}")
        A(f"v_sub_f32 v{b}, v{b}, v{t0}")
        A(f"v_cvt_pk_bf16_f32 v{t3}, v{a}, v{b}")
        A(f"v_lshlrev_b32 v{a}, 16, v{t3}")
        A(f"v_and_b32 v{b}, 0xffff0000, v{t3}")
        for r in (a, b):
            A(f"v_mul_f32 v{t4}, v{r}, v{t2}")
            A(f"v_fma_f32 v{t5}, -v{t4}, v{t1}, v{r}")
            A(f"v_fma_f32 v{t4}, v{t5}, v{t2}, v{t4}")
            A(f"v_cvt_pk_bf16_f32 v{r}, v{t4}, v{t4}")

def gen_k1(A, name="k1_kernel"):
    A.L.append(kernel_header(name))
    A("s_cmp_ge_u32 s2, 208")
    A("s_cbranch_scc1 K1_end")
    A("s_load_dwordx2 s[4:5], s[0:1], 0")
    A("s_load_dwordx2 s[6:7], s[0:1], 24")
    A("s_load_dwordx4 s[24:27], s[0:1], 48")
    A("s_load_dwordx2 s[8:9], s[0:1], 88")
    VL, VG, VR = 1, 2, 3
    A(f"v_and_b32 v{VL}, 63, v0")
    A(f"v_lshrrev_b32 v4, 6, v0")
    A(f"v_lshrrev_b32 v{VG}, 4, v{VL}")
    A(f"v_readfirstlane_b32 s3, v4")
    A(f"v_and_b32 v{VR}, 15, v0")
    A("s_mov_b32 s28, 8192")
    A("s_lshl_b32 s29, s2, 7")
    A("s_waitcnt lgkmcnt(0)")
    A("s_cmp_lt_u32 s2, 64")
    A("s_cbranch_scc1 K1_sel")
    A("s_mov_b32 s28, 9216")
    A("s_sub_u32 s29, s29, 8192")
    A("s_mov_b32 s6, s24"); A("s_mov_b32 s7, s25")
    A("s_cmp_lt_u32 s2, 136")
    A("s_cbranch_scc1 K1_sel")
    A("s_sub_u32 s29, s29, 9216")
    A("s_mov_b32 s6, s26"); A("s_mov_b32 s7, s27")
    A.label("K1_sel")
    A("s_mul_i32 s30, s3, 1152")
    A.srd(12, 4, 1152, off="s30")
    A("s_mul_i32 s31, s28, 576")
    A("s_sub_u32 s31, s31, s29")
    A("s_add_u32 s16, s6, s29"); A("s_addc_u32 s17, s7, 0"); A("s_mov_b32 s18, s31"); A("s_mov_b32 s19, 0x00020000")
    A.srd(20, 8, 8*PRE_ROW)
    X = 8
    A(f"v_lshlrev_b32 v5, 2, v{VL}")
    for j in range(5):
        A(f"buffer_load_dword v{X+j}, v5, s[12:15], 0 offen offset:{j*256}")
    W = 16
    A(f"v_mul_lo_u32 v6, v{VG}, s28")
    A(f"v_lshl_add_u32 v6, v{VR}, 3, v6")
    A("s_mul_i32 s32, s3, 72")
    A("s_mul_i32 s32, s32, s28")
    A("s_lshl_b32 s33, s28, 2")
    for t in range(18):
        A(f"buffer_load_dwordx2 v[{W+2*t}:{W+2*t+1}], v6, s[16:19], s32 offen nt")
        if t < 17: A("s_add_u32 s32, s32, s33")
    M0, M1 = 52+2, 52+3
    M0, M1 = 54, 55
    A(f"v_and_b32 v7, 1, v{VR}")
    A(f"v_mov_b32 v56, 0xffff")
    A(f"v_mov_b32 v57, 0xffff0000")
    A(f"v_cmp_eq_u32 vcc, 1, v7")
    A("s_nop 1")
    A(f"v_cndmask_b32 v56, v56, v57, vcc")
    A(f"v_and_b32 v7, 2, v{VR}")
    A(f"v_cmp_eq_u32 vcc, 0, v7")
    A("s_nop 1")
    A(f"v_cndmask_b32 v{M0}, 0, v56, vcc")
    A(f"v_cndmask_b32 v{M1}, v56, 0, vcc")
    E = 58
    A("s_waitcnt vmcnt(18)")
    emit_ln(A, X, E, [68, 69, 70, 71, 72, 73], VL)
    A("s_mul_i32 s34, s3, 2304")
    A(f"v_lshlrev_b32 v7, 3, v{VL}")
    A(f"v_add_u32 v7, s34, v7")
    for j in range(4):
        A(f"ds_write_b64 v7, v[{E+2*j}:{E+2*j+1}] offset:{j*512}")
    A(f"v_cmp_gt_u32 vcc, 32, v{VL}")
    A("s_and_saveexec_b64 s[36:37], vcc")
    A(f"ds_write_b64 v7, v[{E+8}:{E+9}] offset:{4*512}")
    A("s_mov_b64 exec, s[36:37]")
    A("s_waitcnt lgkmcnt(0)")
    A("s_barrier")
    XD = 80
    A(f"v_lshrrev_b32 v7, 2, v{VR}")
    A(f"v_mul_u32_u24 v7, 2304, v7")
    A(f"v_lshl_add_u32 v7, v{VG}, 2, v7")
    A("s_mul_i32 s34, s3, 288")
    A(f"v_add_u32 v7, s34, v7")
    for t in range(18):
        for p in range(2):
            A(f"ds_read_b32 v{XD+2*t+p}, v7 offset:{16*t+9216*p}")
    D = 116
    for i in range(8): A(f"v_mov_b32 v{D+i}, 0")
    B = 124
    for t in range(18):
        bs = B + 4*(t & 1)
        A(f"s_waitcnt vmcnt({17-t}) lgkmcnt({min(15, 2*(17-t))})")
        for p in range(2):
            A(f"v_and_b32 v{bs+2*p}, v{XD+2*t+p}, v{M0}")
            A(f"v_and_b32 v{bs+2*p+1}, v{XD+2*t+p}, v{M1}")
        A("s_nop 1")
        for p in range(2):
            A(f"v_mfma_f32_16x16x16_bf16 v[{D+4*p}:{D+4*p+3}], v[{W+2*t}:{W+2*t+1}], v[{bs+2*p}:{bs+2*p+1}], v[{D+4*p}:{D+4*p+3}]")
    RED = 18432
    A.nop(8)
    A(f"v_lshlrev_b32 v7, 4, v{VL}")
    A("s_lshl_b32 s34, s3, 11")
    A(f"v_add_u32 v7, s34, v7")
    for p in range(2):
        A(f"ds_write_b128 v7, v[{D+4*p}:{D+4*p+3}] offset:{RED+1024*p}")
    A("s_waitcnt lgkmcnt(0)")
    A("s_barrier")
    A(f"v_and_b32 v8, 3, v{VL}")
    A(f"v_lshlrev_b32 v8, 4, v8")
    A(f"v_lshl_add_u32 v8, v{VG}, 8, v8")
    A(f"v_bfe_u32 v9, v{VL}, 2, 2")
    A(f"v_lshl_add_u32 v8, v9, 2, v8")
    A("s_and_b32 s34, s3, 3")
    A("s_lshl_b32 s34, s34, 6")
    A("s_lshr_b32 s35, s3, 2")
    A("s_lshl_b32 s35, s35, 10")
    A("s_add_u32 s34, s34, s35")
    A(f"v_add_u32 v8, s34, v8")
    for w in range(8):
        A(f"ds_read_b32 v{XD+w}, v8 offset:{RED+2048*w}")
    A("s_waitcnt lgkmcnt(0)")
    for w in range(1, 8):
        A(f"v_add_f32 v{XD}, v{XD}, v{XD+w}")
    A(f"v_cvt_pk_bf16_f32 v{XD}, v{XD}, v{XD}")
    A(f"s_mul_i32 s34, s3, {PRE_ROW}")
    A("s_lshl_b32 s35, s2, 7")
    A("s_add_u32 s34, s34, s35")
    A(f"v_lshlrev_b32 v8, 1, v{VL}")
    A(f"buffer_store_short v{XD}, v8, s[20:23], s34 offen")
    A.label("K1_end")
    A("s_endpgm")
    return dict(name=name, vgpr=132, grid=208, block=512, lds=18432+16384)
```

```python
from asmlib import *
from k1 import WS_PRE, PRE_ROW, WS_Y, WS_ST

YACC = 0
OP = 6912
ST = OP + 4096
TO = ST + 64
WOL = 16384
NLDS = 24
LDS_K2 = WOL + 4*NLDS*1024

VL, VG, VN = 1, 2, 3
M = 4

def mfma32(A, d, a, b, c=None):
    cs = f"v[{d}:{d+3}]" if c is None else c
    A(f"v_mfma_f32_16x16x32_bf16 v[{d}:{d+3}], v[{a}:{a+3}], v[{b}:{b+3}], {cs}")

def emit_project(A, quads, rems_after, src, post, cm, cr, pre_quad, ACC, B, lo):
    for i in range(20): A(f"v_mov_b32 v{ACC+i}, 0")
    bsel = 0
    for t in quads:
        pre_quad(t)
        bs = B + 4*bsel; bsel ^= 1
        for i in range(4): A(f"v_and_b32 v{bs+i}, v{cm(t)}, v{M+i}")
        for cg in range(4):
            w = src('main', t*4+cg)
            if cg == 0: A("s_nop 1")
            mfma32(A, ACC+4*cg, w, bs)
            post('main', t*4+cg)
        if t in rems_after:
            u = rems_after[t]
            w = src('rem', u)
            for h in range(2 if lo else 1):
                bs = B + 4*bsel; bsel ^= 1
                for i in range(4): A(f"v_and_b32 v{bs+i}, v{cr(u)+h}, v{M+i}")
                A("s_nop 1")
                mfma32(A, ACC+16, w, bs)

def emit_yadd(A, ACC, T, YA_main, YA_rem, yoff, sexec_rem):
    A.nop(8)
    k = 0
    for cg in range(4):
        for ip in range(2):
            i = 2*ip
            t = T + (k % 8); k += 1
            A(f"v_add_f32_dpp v{t}, v{ACC+4*cg+i}, v{ACC+4*cg+i} row_ror:8 row_mask:0xf bank_mask:0x3")
            A(f"v_add_f32_dpp v{t}, v{ACC+4*cg+i+1}, v{ACC+4*cg+i+1} row_ror:8 row_mask:0xf bank_mask:0xc")
            A(f"ds_add_f32 v{YA_main}, v{t} offset:{yoff + (cg*128 + 8*i)*4}")
    A(f"s_mov_b64 exec, s[{sexec_rem}:{sexec_rem+1}]")
    for i in range(4):
        A(f"ds_add_f32 v{YA_rem}, v{ACC+16+i} offset:{yoff + 8*i*4}")
    A("s_mov_b64 exec, -1")

def emit_stream_loop(A, R, RING, KO, VO, Q, MX, LS, O, S, Z, P, B, T, ntiles, label):
    def kloads(u):
        for kk in range(4):
            r = RING + 32*u + 4*kk
            A(f"buffer_load_dwordx4 v[{r}:{r+3}], v{KO}, s[20:23], s44 offen offset:{kk*64} nt")
        A("s_add_u32 s44, s44, 16384")
    def vloads(u):
        for i in range(4):
            r = RING + 32*u + 16 + 4*i
            A(f"buffer_load_dwordx4 v[{r}:{r+3}], v{VO}, s[24:27], s45 offen offset:{i*256} nt")
        A("s_add_u32 s45, s45, 16384")
    for u in range(R):
        kloads(u); vloads(u)
    A(f"v_mov_b32 v{MX}, 0xff7fffff")
    A(f"v_mov_b32 v{LS}, 0")
    for i in range(4): A(f"v_mov_b32 v{O+i}, 0")
    A("s_mov_b32 s46, 0x3db504f3")
    A("s_mov_b32 s47, 0x3fb8aa3b")
    A(f"s_mov_b32 s48, {ntiles//R}")
    NW = 8*R - 4
    A.label(label)
    for u in range(R):
        kb = RING + 32*u
        A(f"s_waitcnt vmcnt({NW})")
        for kk in range(4):
            mfma32(A, S, kb+4*kk, Q+4*kk, "0" if kk == 0 else None)
        kloads(u)
        A("s_nop 2")
        for rnd in range(2):
            src = S if rnd == 0 else Z
            A(f"v_cvt_pk_bf16_f32 v{T}, v{src}, v{src+1}")
            A(f"v_cvt_pk_bf16_f32 v{T+1}, v{src+2}, v{src+3}")
            A(f"v_lshlrev_b32 v{Z}, 16, v{T}")
            A(f"v_and_b32 v{Z+1}, 0xffff0000, v{T}")
            A(f"v_lshlrev_b32 v{Z+2}, 16, v{T+1}")
            A(f"v_and_b32 v{Z+3}, 0xffff0000, v{T+1}")
            if rnd == 0:
                for i in range(4): A(f"v_mul_f32 v{Z+i}, s46, v{Z+i}")
        A(f"v_max3_f32 v{T}, v{Z}, v{Z+1}, v{Z+2}")
        A(f"v_max3_f32 v{T}, v{T}, v{Z+3}, v{MX}")
        A.allreduce_rows("v_max_f32", T, T+1)
        A(f"v_sub_f32 v{T+1}, v{MX}, v{T}")
        A(f"v_mul_f32 v{T+1}, s47, v{T+1}")
        A(f"v_exp_f32 v{T+1}, v{T+1}")
        A(f"v_mov_b32 v{MX}, v{T}")
        A(f"v_mul_f32 v{T+2}, s47, v{T}")
        for i in range(4):
            A(f"v_fma_f32 v{P+i}, v{Z+i}, s47, -v{T+2}")
        for i in range(4):
            A(f"v_exp_f32 v{P+i}, v{P+i}")
        for i in range(4):
            A(f"v_mul_f32 v{O+i}, v{O+i}, v{T+1}")
        A(f"v_fma_f32 v{LS}, v{LS}, v{T+1}, v{P}")
        for i in range(1, 4):
            A(f"v_add_f32 v{LS}, v{LS}, v{P+i}")
        for i in range(4):
            A(f"v_cvt_pk_bf16_f32 v{P+i}, v{P+i}, v{P+i}")
        A(f"s_waitcnt vmcnt({NW})")
        vb = kb + 16
        def ands(bs, i):
            for j in range(4): A(f"v_and_b32 v{bs+j}, v{P+i}, v{M+j}")
        def pv(bs, i): mfma32(A, O, vb+4*i, bs)
        ands(B, 0); ands(B+4, 1); pv(B, 0); ands(B, 2); pv(B+4, 1); ands(B+4, 3); pv(B, 2); A("s_nop 0"); pv(B+4, 3)
        vloads(u)
    A("s_sub_u32 s48, s48, 1")
    A("s_cmp_lg_u32 s48, 0")
    A(f"s_cbranch_scc1 {label}")

def gen_k2(A, name="k2_kernel", R=4, wpol="nt", skip_ffn=False, skip_wo=False, skip_tail=False, hin=3):
    A.L.append(kernel_header(name))
    A("s_cmp_ge_u32 s2, 256")
    A("s_cbranch_scc1 K2_end")
    A("s_load_dwordx4 s[4:7], s[0:1], 8")
    A("s_load_dwordx2 s[8:9], s[0:1], 32")
    A("s_load_dwordx2 s[10:11], s[0:1], 64")
    A("s_load_dwordx2 s[12:13], s[0:1], 88")
    A(f"v_and_b32 v{VL}, 63, v0")
    A(f"v_lshrrev_b32 v8, 6, v0")
    A(f"v_lshrrev_b32 v{VG}, 4, v{VL}")
    A(f"v_readfirstlane_b32 s3, v8")
    A(f"v_and_b32 v{VN}, 15, v0")
    A("s_and_b32 s14, s2, 7"); A("s_lshl_b32 s14, s14, 1"); A("s_bfe_u32 s15, s2, 0x10003"); A("s_add_u32 s14, s14, s15")
    A("s_lshr_b32 s15, s2, 5")
    A("s_bfe_u32 s16, s2, 0x10004")
    A("s_lshl_b32 s17, s14, 1"); A("s_add_u32 s17, s17, s16")
    A("s_lshl_b32 s18, s15, 5"); A("s_add_u32 s18, s18, s17")
    for i in range(4): A(f"v_mov_b32 v{12+i}, 0")
    A("v_lshlrev_b32 v8, 4, v0")
    A("v_cmp_gt_u32 vcc, 432, v0")
    A("s_and_saveexec_b64 s[42:43], vcc")
    A(f"ds_write_b128 v8, v[12:15] offset:{YACC}")
    A("s_mov_b64 exec, s[42:43]")
    A(f"v_and_b32 v8, 1, v{VN}")
    A("v_mov_b32 v9, 0xffff"); A("v_mov_b32 v10, 0xffff0000")
    A("v_cmp_eq_u32 vcc, 1, v8")
    A(f"v_bfe_u32 v8, v{VN}, 1, 2")
    A("s_nop 0")
    A("v_cndmask_b32 v9, v9, v10, vcc")
    for i in range(4):
        A(f"v_cmp_eq_u32 vcc, {i}, v8")
        A("s_nop 1")
        A(f"v_cndmask_b32 v{M+i}, 0, v9, vcc")
    A("s_waitcnt lgkmcnt(0)")
    A.srd(28, 12, 0x400000)
    A("s_barrier")
    A("s_cmp_ge_u32 s3, 4")
    A("s_cbranch_scc1 K2_helper")

    A("s_lshl_b32 s19, s15, 4"); A("s_add_u32 s19, s19, s14")
    A("s_lshl_b32 s19, s19, 21"); A("s_lshl_b32 s40, s16, 20"); A("s_add_u32 s19, s19, s40")
    A.srd(20, 4, 0x100000, off="s19")
    A.srd(24, 6, 0x100000, off="s19")
    KO, VO, MX, LS, O, S, Z, P, B, Q, T, RING = 8, 9, 10, 11, 12, 16, 20, 24, 28, 36, 52, 64
    A(f"v_lshlrev_b32 v{KO}, 8, v{VN}"); A(f"v_lshl_add_u32 v{KO}, v{VG}, 4, v{KO}")
    A(f"v_lshlrev_b32 v{VO}, 10, v{VG}"); A(f"v_lshl_add_u32 v{VO}, v{VN}, 4, v{VO}")
    A(f"v_lshrrev_b32 v{T}, 3, v{VN}"); A(f"v_lshlrev_b32 v{T}, 8, v{T}"); A(f"v_lshl_add_u32 v{T}, v{VG}, 4, v{T}")
    A(f"s_mul_i32 s40, s15, {PRE_ROW}"); A("s_lshl_b32 s41, s14, 9"); A("s_add_u32 s40, s40, s41")
    for kk in range(4):
        A(f"buffer_load_dwordx4 v[{Q+4*kk}:{Q+4*kk+3}], v{T}, s[28:31], s40 offen offset:{WS_PRE + kk*64}")
    A("s_lshl_b32 s44, s3, 12")
    A("s_lshl_b32 s45, s3, 12")
    emit_stream_loop(A, R, RING, KO, VO, Q, MX, LS, O, S, Z, P, B, T, 64, "K2_loop")
    A.allreduce_rows("v_add_f32", LS, T)
    A(f"v_lshlrev_b32 v{T}, 4, v{VL}")
    A("s_lshl_b32 s40, s3, 10")
    A(f"v_add_u32 v{T}, s40, v{T}")
    A.nop(4)
    A(f"ds_write_b128 v{T}, v[{O}:{O+3}] offset:{OP}")
    A(f"v_and_b32 v{T+1}, 8, v{VL}")
    A("s_lshl_b32 s40, s3, 4")
    A(f"v_add_u32 v{T+1}, s40, v{T+1}")
    A("s_mov_b64 exec, 0x101")
    A(f"ds_write_b64 v{T+1}, v[{MX}:{MX+1}] offset:{ST}")
    A("s_mov_b64 exec, -1")
    A("s_waitcnt vmcnt(0) lgkmcnt(0)")
    A("s_barrier")
    A("s_endpgm")

    A.label("K2_helper")
    A("s_sub_u32 s19, s3, 4")
    VM, VR_, TM, TR, YM, YR, SC0, SC1 = 8, 9, 10, 11, 12, 13, 14, 15
    ACC, B, W = 16, 36, 64
    A(f"v_mul_u32_u24 v{VM}, 1152, v{VG}"); A(f"v_lshl_add_u32 v{VM}, v{VN}, 4, v{VM}")
    A(f"v_lshrrev_b32 v{SC0}, 3, v{VN}")
    A(f"v_lshl_add_u32 v{SC1}, v{SC0}, 2, v{VG}")
    A(f"v_mul_u32_u24 v{VR_}, 1152, v{SC1}"); A(f"v_and_b32 v{YR}, 7, v{VN}"); A(f"v_lshl_add_u32 v{VR_}, v{YR}, 4, v{VR_}")
    A(f"v_add_u32 v{VR_}, 1024, v{VR_}")
    A(f"s_lshl_b32 s54, s19, 9"); A(f"s_add_u32 s54, s54, {TO}")
    A(f"v_lshlrev_b32 v{TM}, 3, v{VG}"); A(f"v_lshl_add_u32 v{TM}, v{SC0}, 2, v{TM}"); A(f"v_add_u32 v{TM}, s54, v{TM}")
    A(f"v_lshlrev_b32 v{TR}, 3, v{SC1}"); A(f"v_add_u32 v{TR}, s54, v{TR}")
    A(f"v_lshlrev_b32 v{YM}, 5, v{VG}"); A(f"v_add_u32 v{YM}, v{YM}, v{VN}"); A(f"v_lshlrev_b32 v{YM}, 2, v{YM}")
    A(f"v_and_b32 v{SC0}, 1, v{VG}"); A(f"v_lshl_add_u32 v{YR}, v{SC0}, 5, v{YR}")
    A(f"v_lshlrev_b32 v{YR}, 2, v{YR}"); A(f"v_add_u32 v{YR}, 2048, v{YR}")
    A("s_mov_b32 s50, 0x00ff00ff"); A("s_mov_b32 s51, 0xff00ff00")
    if skip_ffn: A("s_branch K2_skipffn")
    A("s_mul_i32 s40, s17, 144"); A("s_mul_i32 s41, s19, 36"); A("s_add_u32 s40, s40, s41")
    A("s_mul_i32 s41, s40, 1152")
    A.srd(36, 10, 36*1152, off="s41")
    A(f"s_mul_i32 s41, s15, {PRE_ROW}"); A("s_lshl_b32 s42, s40, 1"); A("s_add_u32 s41, s41, s42")
    A(f"v_lshlrev_b32 v{SC0}, 1, v{VL}")
    A(f"s_add_u32 s42, s41, {4096*2}"); A(f"s_add_u32 s43, s41, {8704*2}")
    G, U = B, B+1
    A(f"buffer_load_ushort v{G}, v{SC0}, s[28:31], s42 offen")
    A(f"buffer_load_ushort v{U}, v{SC0}, s[28:31], s43 offen")
    srcmap = {}
    n = 0
    A("s_mov_b32 s44, 0")
    for t in range(9):
        for cg in range(4):
            A(f"buffer_load_dwordx4 v[{W+4*n}:{W+4*n+3}], v{VM}, s[36:39], s44 offen offset:{cg*256} {wpol}")
            srcmap[('main', t*4+cg)] = W+4*n; n += 1
            if hin: A(f"s_waitcnt vmcnt({hin-1})")
        A("s_add_u32 s44, s44, 4608")
    A("s_mov_b32 s44, 0")
    for u in range(5):
        A(f"buffer_load_dwordx4 v[{W+4*n}:{W+4*n+3}], v{VR_}, s[36:39], s44 offen {wpol}")
        srcmap[('rem', u)] = W+4*n; n += 1
        if hin: A(f"s_waitcnt vmcnt({hin-1})")
        A("s_add_u32 s44, s44, 9216")
    NF = n
    A(f"s_waitcnt vmcnt({NF})")
    a, b_, c_, d_, e_ = B+2, B+3, B+4, B+5, B+6
    A(f"v_lshlrev_b32 v{G}, 16, v{G}"); A(f"v_lshlrev_b32 v{U}, 16, v{U}")
    A(f"v_mul_f32 v{a}, 0xbfb8aa3b, v{G}")
    A(f"v_exp_f32 v{a}, v{a}")
    A("s_nop 0")
    A(f"v_add_f32 v{a}, 1.0, v{a}")
    A(f"v_rcp_f32 v{b_}, v{a}")
    A("s_nop 0")
    A(f"v_mul_f32 v{c_}, v{G}, v{b_}")
    A(f"v_fma_f32 v{d_}, -v{c_}, v{a}, v{G}")
    A(f"v_fma_f32 v{c_}, v{d_}, v{b_}, v{c_}")
    A(f"v_cvt_pk_bf16_f32 v{c_}, v{c_}, v{c_}")
    A(f"v_and_b32 v{c_}, 0xffff0000, v{c_}")
    A(f"v_mul_f32 v{c_}, v{c_}, v{U}")
    A(f"v_cvt_pk_bf16_f32 v{c_}, v{c_}, v{c_}")
    A(f"v_mov_b32 v{d_}, 0")
    A(f"v_cmp_gt_u32 vcc, 36, v{VL}")
    A("s_nop 1")
    A(f"v_cndmask_b32 v{c_}, 0, v{c_}, vcc")
    A(f"v_lshlrev_b32 v{SC0}, 3, v{VL}"); A(f"v_add_u32 v{SC0}, s54, v{SC0}")
    A(f"ds_write_b64 v{SC0}, v[{c_}:{d_}]")
    A("s_waitcnt lgkmcnt(0)")
    CO = 232
    for t in range(9): A(f"ds_read_b32 v{CO+t}, v{TM} offset:{t*32}")
    RO = CO + 10
    for u in range(5): A(f"ds_read_b64 v[{RO+2*u}:{RO+2*u+1}], v{TR} offset:{u*64}")
    A("s_waitcnt vmcnt(0) lgkmcnt(0)")
    emit_project(A, list(range(9)), {1: 0, 3: 1, 5: 2, 7: 3, 8: 4}, lambda k, i: srcmap[(k, i)], lambda k, i: None,
                 lambda t: CO+t, lambda u: RO+2*u, lambda t: None, ACC, B, lo=False)
    emit_yadd(A, ACC, B, YM, YR, YACC + 2*2304, 50)
    A.label("K2_skipffn")
    A(f"v_lshlrev_b32 v{SC0}, 3, v{VL}"); A(f"v_add_u32 v{SC0}, s54, v{SC0}")
    A(f"s_mul_i32 s40, s14, {256*1152}"); A(f"s_mul_i32 s41, s19, {64*1152}"); A("s_add_u32 s40, s40, s41")
    A.srd(32, 8, 64*1152, off="s40")
    order = [('main', k) for k in range(64)] + [('rem', u) for u in range(8)]
    srcmap2 = {}
    n = 0; nl = 0
    A(f"s_mul_i32 s52, s19, {NLDS*1024}"); A(f"s_add_u32 s52, s52, {WOL}")
    A("s_mov_b32 s53, s52")
    cnt = 0
    for (kind, idx) in order:
        if kind == 'main':
            off = (idx//4)*4608 + (idx%4)*256; vo = VM
        else:
            off = idx*9216; vo = VR_
        if kind == 'main' and idx < NLDS:
            A("s_mov_b32 m0, s53")
            A(f"s_mov_b32 s44, {off}")
            A("s_add_u32 s53, s53, 1024")
            A(f"buffer_load_dwordx4 v{vo}, s[32:35], s44 offen {wpol} lds")
            srcmap2[(kind, idx)] = ('lds', nl); nl += 1
        else:
            A(f"s_mov_b32 s44, {off}")
            A(f"buffer_load_dwordx4 v[{W+4*n}:{W+4*n+3}], v{vo}, s[32:35], s44 offen {wpol}")
            srcmap2[(kind, idx)] = ('reg', W+4*n); n += 1
        cnt += 1
        if skip_wo:
            assert A.L[-1].strip().startswith("buffer_load"); A.L.pop()
        if hin: A(f"s_waitcnt vmcnt({hin-1})")
        elif cnt % 16 == 0: A("s_waitcnt vmcnt(8)")
    assert W + 4*n <= 256, n
    A(f"v_lshlrev_b32 v{SC1}, 4, v{VL}"); A(f"v_add_u32 v{SC1}, s52, v{SC1}")
    A("s_waitcnt vmcnt(0)")
    A("s_barrier")
    if skip_tail: A("s_endpgm")
    A("s_lshr_b32 s40, s19, 1")
    A("s_and_b32 s41, s19, 1")
    t0, t1 = B+14, B+15
    A(f"v_lshrrev_b32 v{t0}, 5, v{VL}"); A("s_lshl_b32 s42, s41, 1"); A(f"v_add_u32 v{t0}, s42, v{t0}")
    A(f"v_lshlrev_b32 v{t0}, 8, v{t0}")
    A(f"v_and_b32 v{t1}, 7, v{VL}"); A(f"v_lshl_add_u32 v{t0}, v{t1}, 4, v{t0}")
    A(f"v_bfe_u32 v{t1}, v{VL}, 3, 2"); A(f"v_lshl_add_u32 v{t0}, v{t1}, 2, v{t0}")
    A("s_lshl_b32 s42, s40, 7"); A(f"v_add_u32 v{t0}, s42, v{t0}")
    OPr = ACC
    SR = ACC + 4
    for w in range(4): A(f"ds_read_b32 v{OPr+w}, v{t0} offset:{OP + 1024*w}")
    A("s_lshl_b32 s42, s40, 3"); A(f"v_mov_b32 v{t1}, s42")
    for w in range(4): A(f"ds_read_b64 v[{SR+2*w}:{SR+2*w+1}], v{t1} offset:{ST + 16*w}")
    A("s_waitcnt lgkmcnt(0)")
    MM, LL, OO = ACC+12, ACC+13, ACC+14
    A(f"v_max3_f32 v{MM}, v{SR}, v{SR+2}, v{SR+4}"); A(f"v_max_f32 v{MM}, v{MM}, v{SR+6}")
    A("s_mov_b32 s47, 0x3fb8aa3b")
    for w in range(4):
        A(f"v_sub_f32 v{SR+2*w}, v{SR+2*w}, v{MM}"); A(f"v_mul_f32 v{SR+2*w}, s47, v{SR+2*w}"); A(f"v_exp_f32 v{SR+2*w}, v{SR+2*w}")
    A("s_nop 0")
    A(f"v_mul_f32 v{LL}, v{SR}, v{SR+1}"); A(f"v_mul_f32 v{OO}, v{SR}, v{OPr}")
    for w in range(1, 4):
        A(f"v_fmac_f32 v{LL}, v{SR+2*w}, v{SR+2*w+1}"); A(f"v_fmac_f32 v{OO}, v{SR+2*w}, v{OPr+w}")
    HI, LO = ACC+16, ACC+17
    A(f"v_cvt_pk_bf16_f32 v{HI}, v{OO}, v{OO}")
    A(f"v_and_b32 v{LO}, 0xffff0000, v{HI}")
    A(f"v_sub_f32 v{LO}, v{OO}, v{LO}")
    A(f"v_cvt_pk_bf16_f32 v{LO}, v{LO}, v{LO}")
    A(f"ds_write_b64 v{SC0}, v[{HI}:{LO}]")
    A("s_cmp_lg_u32 s41, 0")
    A("s_cbranch_scc1 K2_nostat")
    A("s_lshl_b32 s42, s18, 4"); A("s_lshl_b32 s43, s40, 3"); A("s_add_u32 s42, s42, s43"); A(f"s_add_u32 s42, s42, {WS_ST}")
    A(f"v_mov_b32 v{t1}, 0")
    A("s_mov_b64 exec, 1")
    A(f"buffer_store_dwordx2 v[{MM}:{LL}], v{t1}, s[28:31], s42 offen")
    A("s_mov_b64 exec, -1")
    A.label("K2_nostat")
    A("s_waitcnt lgkmcnt(0)")
    nq_lds = NLDS // 4
    quads = list(range(nq_lds, 16)) + list(range(nq_lds))
    refill = {}
    pend = list(range(NLDS))
    def post(kind, idx):
        typ, val = srcmap2[(kind, idx)]
        if typ == 'reg' and pend:
            k = pend.pop(0)
            A(f"ds_read_b128 v[{val}:{val+3}], v{SC1} offset:{k*1024}")
            refill[k] = val
    def src_w(kind, idx):
        typ, val = srcmap2[(kind, idx)]
        if typ == 'reg': return val
        return refill[val]
    CB = B + 8
    def issue(u):
        base = CB + 4*(u & 1)
        A(f"ds_read_b32 v{base}, v{TM} offset:{(2*u)*32}")
        A(f"ds_read_b32 v{base+1}, v{TM} offset:{(2*u+1)*32}")
        A(f"ds_read_b64 v[{base+2}:{base+3}], v{TR} offset:{u*64}")
    pair_order = [q//2 for q in quads[::2]]
    issue(pair_order[0])
    def pre_quad(t):
        if t % 2 == 0:
            A("s_waitcnt lgkmcnt(0)")
            k = pair_order.index(t//2)
            if k + 1 < len(pair_order): issue(pair_order[k+1])
    emit_project(A, quads, {2*u+1: u for u in range(8)}, src_w, post,
                 lambda t: CB + 4*((t//2) & 1) + (t & 1), lambda u: CB + 4*(u & 1) + 2, pre_quad, ACC, B, lo=True)
    A("s_mul_i32 s42, s40, 2304")
    A(f"v_add_u32 v{YM}, s42, v{YM}"); A(f"v_add_u32 v{YR}, s42, v{YR}")
    emit_yadd(A, ACC, B, YM, YR, YACC, 50)
    A("s_waitcnt lgkmcnt(0)")
    A("s_barrier")
    A(f"v_subrev_u32 v{SC0}, 256, v0")
    A(f"v_lshlrev_b32 v{SC0}, 4, v{SC0}")
    A(f"ds_read_b128 v[16:19], v{SC0} offset:{YACC}")
    A(f"ds_read_b128 v[20:23], v{SC0} offset:{YACC+4096}")
    A(f"s_mul_i32 s42, s18, 6912"); A(f"s_add_u32 s42, s42, {WS_Y}")
    A("s_waitcnt lgkmcnt(0)")
    A(f"buffer_store_dwordx4 v[16:19], v{SC0}, s[28:31], s42 offen")
    A(f"v_cmp_gt_u32 vcc, 2816, v{SC0}")
    A("s_and_saveexec_b64 s[44:45], vcc")
    A("s_cbranch_execz K2_end")
    A("s_add_u32 s42, s42, 4096")
    A(f"buffer_store_dwordx4 v[20:23], v{SC0}, s[28:31], s42 offen")
    A.label("K2_end")
    A("s_endpgm")
    return dict(name=name, vgpr=256, grid=256, block=512, lds=LDS_K2)
```

```python
import sys
sys.path.insert(0, "gen"); sys.path.insert(0, "exp")
from asmlib import *
import fused
HEAD = open("parallel_sum__gqa_block_cached__swiglu_ffn__decode.s.ref").read().split("; Override")[0]
def build_fused(out, **kw):
    A = Asm()
    i = fused.gen_fused(A, **kw)
    hdr = HEAD + f"; @launch grid=({i['grid']},1,1) block=({i['block']},1,1) lds={i['lds']}\n"
    txt = hdr + '.amdgcn_target "amdgcn-amd-amdhsa--gfx950"\n.text\n' + A.text() + '.section .rodata,"a"\n.p2align 6\n' + kernel_desc(i['name'], i['vgpr'])
    open(out, "w").write(txt)
    return txt
if __name__ == "__main__":
    out = sys.argv[1] if len(sys.argv) > 1 else "src_f1.s"
    build_fused(out)
```
